```python
import torch

def _softmax(x, axis=-1):
    return torch.softmax(x, dim=axis)
def _gelu(x):
    return torch.nn.functional.gelu(x, approximate="tanh")
def _silu(x):
    return torch.nn.functional.silu(x)
def _sigmoid(x):
    return torch.sigmoid(x)
def _layernorm(x, axis=-1, eps=1e-5):
    m = x.mean(dim=axis, keepdim=True)
    v = x.var(dim=axis, keepdim=True, unbiased=False)
    return (x - m) / torch.sqrt(v + eps)
def _scatter_add(tgt, idx, src, axis=0):
    return tgt.clone().index_add_(axis, idx, src)
def _segment_sum(src, seg, n):
    out = torch.zeros((n,) + src.shape[1:], dtype=src.dtype)
    return out.index_add_(0, seg, src)
def _pad(x, pw):
    flat = tuple(v for pair in reversed(pw) for v in pair)
    return torch.nn.functional.pad(x, flat)

kernel_name = 'sequential_preLN__spectral_gfnet__glu_gated_swiglu__prompt'

def setup_inputs():

    _w = (lambda a: (lambda t: t.to(torch.bfloat16) if t.is_floating_point() else t)(torch.as_tensor(a)))
    def _A_setup():
        B, S, D = 1, 2048, 448
        Df = D // 2 + 1
        return {
            "x": _w((lambda *s: torch.randn(*s, dtype=torch.bfloat16) * 0.05)(B, S, D)),
            "w_r": _w((lambda *s: torch.randn(*s, dtype=torch.bfloat16) * 0.4)(S, Df) * 0.02),
            "w_i": _w((lambda *s: torch.randn(*s, dtype=torch.bfloat16) * 0.4)(S, Df) * 0.02),
        }
    _A_in = _A_setup()

    def _B_setup():
        B, S, D, F = 1, 2048, 448, 1792
        return {
            "x": _w((lambda *s: torch.randn(*s, dtype=torch.bfloat16) * 0.05)(B, S, D)),
            "w1": _w((lambda *s: torch.randn(*s, dtype=torch.bfloat16) * 0.2)(D, F) * (2.0 / D) ** 0.5),
            "w3": _w((lambda *s: torch.randn(*s, dtype=torch.bfloat16) * 0.2)(D, F) * (2.0 / D) ** 0.5),
            "w2": _w((lambda *s: torch.randn(*s, dtype=torch.bfloat16) * 0.2)(F, D) * (2.0 / F) ** 0.5),
        }
    _B_in = _B_setup()

    return {
        "A_x": _A_in["x"],
        "A_w_r": _A_in["w_r"],
        "A_w_i": _A_in["w_i"],
        "B_x": _B_in["x"],
        "B_w1": _B_in["w1"],
        "B_w3": _B_in["w3"],
        "B_w2": _B_in["w2"],
    }

def reference(A_x, A_w_r, A_w_i, B_x, B_w1, B_w3, B_w2):
    def _A_ref(x, w_r, w_i):
        B, S, D = x.shape
        X = (lambda x, axes=(-2,-1): torch.fft.rfft2(x.float(), dim=axes))(x, axes=(-2, -1))
        W = w_r + 1j * w_i
        X = X * W
        y = (lambda x, s, axes=(-2,-1): torch.fft.irfft2(x, s=s, dim=axes).to(torch.bfloat16))(X, (S, D), axes=(-2, -1))
        return y

    def _B_ref(x, w1, w3, w2):
        gate = torch.einsum("bsd,df->bsf", x, w1)
        up = torch.einsum("bsd,df->bsf", x, w3)
        h = _silu(gate) * up
        out = torch.einsum("bsf,fd->bsd", h, w2)
        return out

    x = A_x
    h = x + _A_ref(_layernorm(x, axis=-1), A_w_r, A_w_i)
    h2 = h + _B_ref(_layernorm(h, axis=-1), B_w1, B_w3, B_w2)
    return h2
```

```python
import re

REG_RE = re.compile(r'\b([vas])(\d+)\b|\b([vas])\[(\d+):(\d+)\]')

def regs_of(tok):
    tok = tok.strip()
    out = []
    m = re.fullmatch(r'-?\|?([vas])(\d+)\|?', tok) or re.fullmatch(r'abs\(([vas])(\d+)\)', tok)
    if m: return [(m.group(1), int(m.group(2)))]
    m = re.fullmatch(r'-?([vas])\[(\d+):(\d+)\]', tok)
    if m: return [(m.group(1), i) for i in range(int(m.group(2)), int(m.group(3)) + 1)]
    if tok == 'vcc': return [('s', 'vcc')]
    if tok == 'exec': return [('s', 'exec')]
    if tok == 'm0': return [('s', 'm0')]
    return out

TRANS = ('v_exp_f32', 'v_log_f32', 'v_rcp_f32', 'v_rsq_f32', 'v_sqrt_f32', 'v_sin_f32', 'v_cos_f32', 'v_rcp_iflag_f32')

class I:
    __slots__ = ('text', 'op', 'w', 'r', 'kind', 'tag', 'passes', 'srcC', 'dpp_r', 'nbytes', 'mods')
    def __init__(self, text, tag=None):
        self.text = text.strip(); self.tag = tag
        t = self.text.split(';')[0].strip()
        self.op = t.split()[0] if t else ''
        rest = t[len(self.op):].strip()
        ops = []; depth = 0; cur = ''
        for ch in rest:
            if ch == '[': depth += 1
            if ch == ']': depth -= 1
            if ch == ',' and depth == 0: ops.append(cur.strip()); cur = ''
            else: cur += ch
        if cur.strip(): ops.append(cur.strip())
        mods = ''
        if ops:
            parts = ops[-1].split(None, 1)
            if len(parts) == 2:
                ops[-1] = parts[0]; mods = parts[1]
            elif len(parts) == 1 and (parts[0] in ('offen', 'lds') or ':' in parts[0] and not parts[0].startswith(('v[', 's[', 'a['))):
                if not re.match(r'^-?[vas]\[', parts[0]):
                    mods = parts[0]; ops = ops[:-1]
        self.mods = mods
        op = self.op
        R = [regs_of(o) for o in ops]
        w = []; r = []; self.kind = 'other'; self.passes = 0; self.srcC = []; self.dpp_r = []
        def allr(k0):
            x = []
            for q in R[k0:]: x += q
            return x
        if op.startswith('v_mfma'):
            self.kind = 'mfma'
            self.passes = 8 if '32x32' in op else 4
            w = R[0]; r = R[1] + R[2] + (R[3] if len(R) > 3 else []); self.srcC = R[3] if len(R) > 3 else []
        elif op.startswith('v_cmpx'):
            self.kind = 'valu'; w = R[0] + [('s', 'exec')]; r = allr(1)
        elif op.startswith('v_cmp'):
            self.kind = 'valu'; w = R[0]; r = allr(1)
        elif op.startswith(('v_readfirstlane', 'v_readlane')):
            self.kind = 'valu'; w = R[0]; r = allr(1)
        elif op.startswith('v_permlane') and 'swap' in op:
            self.kind = 'valu'; w = R[0] + R[1]; r = R[0] + R[1]
        elif op.startswith(('v_add_co', 'v_sub_co', 'v_addc_co', 'v_subb_co', 'v_subrev_co')):
            self.kind = 'valu'; w = R[0] + R[1]; r = allr(2)
        elif op.startswith('v_'):
            self.kind = 'valu'; w = R[0]; r = allr(1)
            if op.startswith(('v_fmac', 'v_dot2c', 'v_pk_fmac', 'v_writelane')) : r = r + R[0]
            if op.startswith('v_cndmask') and len(ops) == 3: r = r + [('s', 'vcc')]
            if '_dpp' in op or 'row_' in mods or 'quad_perm' in mods:
                self.dpp_r = R[1]; r = r + R[0]
            if 'sdwa' in op and 'UNUSED_PRESERVE' in mods and 'dst_sel:DWORD' not in mods: r = r + R[0]
        elif op.startswith('buffer_load') or op.startswith('global_load'):
            if ' lds' in (' ' + mods) or op.startswith('global_load_lds'):
                self.kind = 'vmem_dma'; r = allr(0) + [('s', 'm0')]
            else:
                self.kind = 'vmem_ld'; w = R[0]; r = allr(1)
                if 'd16' in op: r = r + R[0]
        elif op.startswith('buffer_store'):
            self.kind = 'vmem_st'; r = allr(0)
        elif op.startswith('global_store'):
            self.kind = 'vmem_st'; r = allr(0)
        elif op.startswith(('buffer_atomic', 'global_atomic')):
            if 'sc0' in mods:
                self.kind = 'vmem_ld'
                if op.startswith('buffer'): w = R[0]; r = allr(0)
                else: w = R[0]; r = allr(1)
            else:
                self.kind = 'vmem_st'; r = allr(0)
        elif op.startswith(('buffer_inv', 'buffer_wbl2')):
            self.kind = 'vmem_st'
        elif op.startswith(('ds_read', 'ds_bpermute', 'ds_permute', 'ds_swizzle')):
            self.kind = 'ds_ld'; w = R[0]; r = allr(1)
            if 'd16' in op: r = r + R[0]
        elif op.startswith('ds_'):
            self.kind = 'ds_st'; r = allr(0)
        elif op.startswith(('s_load', 's_buffer_load', 's_memtime', 's_memrealtime')):
            self.kind = 'smem'; w = R[0]; r = allr(1)
        elif op in ('s_waitcnt', 's_nop', 's_barrier', 's_endpgm', 's_sleep', 's_setprio', 's_branch') or op.startswith('s_cbranch'):
            self.kind = op if op in ('s_waitcnt', 's_nop', 's_barrier') else 'ctrl'
            if op == 's_cbranch_vccz' or op == 's_cbranch_vccnz': r = [('s', 'vcc')]
            if op == 's_cbranch_execz' or op == 's_cbranch_execnz': r = [('s', 'exec')]
        elif op.startswith('s_cmp') or op.startswith('s_bitcmp'):
            self.kind = 'salu'; r = allr(0)
        elif op.startswith('s_'):
            self.kind = 'salu'; w = R[0] if R else []; r = allr(1)
            if 'saveexec' in op: w = w + [('s', 'exec')]; r = r + [('s', 'exec')]
            if op.startswith(('s_addk', 's_mulk')): r = r + R[0]
        elif op.endswith(':') or op.startswith('.'):
            self.kind = 'label' if op.endswith(':') else 'dir'
        self.w = w; self.r = r
    def wide_store(self):
        return self.kind == 'vmem_st' and ('x4' in self.op or 'x3' in self.op)

class Prog:
    def __init__(self):
        self.items = []
    def __call__(self, text, tag=None):
        for line in text.split('\n'):
            s = line.strip()
            if not s or s.startswith(';'):
                continue
            self.items.append(I(s, tag))
    def raw(self, text): self.items.append(('raw', text))
    def wait_tag(self, tag):
        self.items.append(('waitfor', tag))
    def fence(self):
        self.items.append(('fence',))
    def extend(self, other): self.items += other.items

    def finalize(self, check_only=False):
        out = []
        vq = []
        lq = []
        hist = []
        slot = 0
        stats = dict(nops=0, waits=0)
        def emit(text, ins=None, states=1):
            nonlocal slot
            out.append('  ' + text)
            if ins is not None: hist.append((ins, slot))
            slot += states
            while len(hist) > 64: hist.pop(0)
        def do_wait(vn=None, ln=None):
            parts = []
            if vn is not None: parts.append('vmcnt(%d)' % min(vn, 63))
            if ln is not None: parts.append('lgkmcnt(%d)' % min(ln, 15))
            if parts:
                emit('s_waitcnt ' + ' '.join(parts)); stats['waits'] += 1
        def need(q, pred):
            idx = -1
            for i, e in enumerate(q):
                if pred(e): idx = i
            return idx
        def settle(vi, li):
            nonlocal vq, lq
            vn = ln = None
            if vi >= 0:
                vn = len(vq) - 1 - vi; vq = vq[vi + 1:]
            if li >= 0:
                if any(e['smem'] for e in lq):
                    ln = 0; lq = []
                else:
                    ln = len(lq) - 1 - li; lq = lq[li + 1:]
            do_wait(vn, ln)
        for it in self.items:
            if isinstance(it, tuple):
                if it[0] == 'raw': out.append(it[1])
                elif it[0] == 'waitfor':
                    tag = it[1]
                    settle(need(vq, lambda e: e['tag'] == tag), need(lq, lambda e: e['tag'] == tag))
                elif it[0] == 'fence':
                    vq = []; lq = []
                continue
            ins = it
            if ins.kind in ('label', 'dir'):
                if ins.kind == 'label' and (vq or lq) and ins.tag != 'nosettle':
                    vi = need(vq, lambda e: e['w']); li = need(lq, lambda e: e['w'])
                    settle(vi, li)
                out.append(ins.text)
                if ins.kind == 'label':
                    pass
                continue
            if ins.kind == 's_waitcnt':
                m = re.search(r'vmcnt\((\d+)\)', ins.text)
                if m:
                    n = int(m.group(1)); vq = vq[max(0, len(vq) - n):] if n < len(vq) else vq
                m = re.search(r'lgkmcnt\((\d+)\)', ins.text)
                if m:
                    n = int(m.group(1))
                    if n == 0: lq = []
                    elif not any(e['smem'] for e in lq): lq = lq[max(0, len(lq) - n):] if n < len(lq) else lq
                emit(ins.text, ins); continue
            touched = set(ins.r) | set(ins.w)
            vi = need(vq, lambda e: e['w'] & touched)
            li = need(lq, lambda e: e['w'] & touched)
            if ins.kind == 'ctrl' and ins.op != 's_sleep' and ins.op != 's_setprio' and ins.op != 's_endpgm' and ins.tag != 'nosettle':
                vi = max(vi, need(vq, lambda e: e['w'])); li = max(li, need(lq, lambda e: e['w']))
            settle(vi, li)
            req = 0
            rs = set(ins.r); ws = set(ins.w)
            for (p, ps) in reversed(hist):
                dist = slot - ps - 1
                if p.kind == 's_nop':
                    continue
                pw = set(p.w); n = 0
                if p.kind == 'valu':
                    vg = {x for x in pw if x[0] in 'va'}
                    sg = {x for x in pw if x[0] == 's'}
                    if ins.kind == 'mfma' and vg & rs: n = max(n, 2)
                    if ins.kind == 'mfma' and ('s', 'exec') in sg: n = max(n, 4)
                    if ins.kind == 'valu':
                        if ins.op.startswith('v_permlane') and vg & rs: n = max(n, 2)
                        if vg & set(ins.dpp_r): n = max(n, 2)
                        if ins.dpp_r and ('s', 'exec') in sg: n = max(n, 5)
                        if ins.op.startswith(('v_readlane', 'v_readfirstlane')) and vg & rs: n = max(n, 1)
                        if ins.op.startswith(('v_readlane', 'v_writelane')) and sg & rs: n = max(n, 4)
                        if sg & rs: n = max(n, 2)
                        if p.op.replace('_e32', '').replace('_e64', '') in TRANS and vg & rs: n = max(n, 1)
                        if ('sdwa' in p.op or 'op_sel' in p.mods and not p.op.startswith('v_pk')) and vg & (rs | ws): n = max(n, 1)
                    if ins.kind.startswith('vmem') and sg & rs: n = max(n, 5)
                    if ins.kind == 'ctrl' and sg & rs: n = max(n, 5 if 'vcc' in ins.op or 'exec' in ins.op else 0)
                    if ins.kind == 'salu' and sg & rs: n = max(n, 4)
                if p.kind == 'mfma':
                    P = p.passes
                    if ins.kind == 'mfma':
                        if pw & set(ins.srcC):
                            if not (set(ins.srcC) == pw and ins.passes == P): n = max(n, P + 2)
                        ab = rs - set(ins.srcC)
                        if pw & ab: n = max(n, P + 4)
                        if pw & ws and not (pw & set(ins.srcC)): n = max(n, P + 2)
                    elif ins.kind in ('valu', 'vmem_ld', 'vmem_st', 'vmem_dma', 'ds_ld', 'ds_st'):
                        if pw & (rs | ws): n = max(n, P + 4)
                        if ins.kind == 'valu' and set(p.srcC) & ws: n = max(n, P - 1)
                if p.kind == 'vmem_st' and p.wide_store():
                    data = set(p.r)
                    if ins.kind == 'valu' and data & ws: n = max(n, 2)
                    elif data & ws: n = max(n, 1)
                if p.kind == 'salu' and ('s', 'm0') in pw and ins.kind == 'vmem_dma': n = max(n, 1)
                if n > dist: req = max(req, n - dist)
            while req > 0:
                k = min(req, 16)
                emit('s_nop %d' % (k - 1), None, k); stats['nops'] += 1
                req -= k
            if ins.kind == 's_nop':
                k = int(ins.text.split()[1]) + 1
                emit(ins.text, ins, k); continue
            emit(ins.text, ins)
            if ins.kind in ('vmem_ld', 'vmem_st', 'vmem_dma'):
                vq.append(dict(w=set(ins.w), tag=ins.tag))
            elif ins.kind in ('ds_ld', 'ds_st'):
                lq.append(dict(w=set(ins.w), tag=ins.tag, smem=False))
            elif ins.kind == 'smem':
                lq.append(dict(w=set(ins.w), tag=ins.tag, smem=True))
        return '\n'.join(out) + '\n', stats

def vr(base, n=1, k='v'):
    return f'{k}{base}' if n == 1 else f'{k}[{base}:{base + n - 1}]'
def ar(base, n=1): return vr(base, n, 'a')
def sr(base, n=1): return vr(base, n, 's')

import struct
def fbits(x):
    return '0x%08x' % struct.unpack('<I', struct.pack('<f', x))[0]
```

```python
from asm import *
import math
X1T = 0x000000
WT  = 0x200000
Y1T = 0x400000
HRES= 0x600000
AF  = 0x800000
W13F= 0xA00000
W2F = 0xE00000
HF  = 0x1000000
FLG = 0x1800000
WS_SIZE = 0x2000000
OOB = 0x7ff00000

def srd(p, s, ptr_s, size):
    p(f"s_mov_b32 s{s}, s{ptr_s}")
    p(f"s_and_b32 s{s+1}, s{ptr_s+1}, 0xffff")
    p(f"s_mov_b32 s{s+2}, {size}")
    p(f"s_mov_b32 s{s+3}, 0x20000")

def sincos_pack(p, dst_cos, dst_sin, n, base, step, mults, tmp, neg_sin=None, neg_cos=None):
    assert n % 2 == 0
    for i in range(0, n, 2):
        a0, a1, c0, c1, s0, s1 = [tmp + q for q in range(6)]
        for (a, m) in ((a0, mults[i]), (a1, mults[i + 1])):
            if m == 0: p(f"v_mov_b32 v{a}, v{base}")
            else: p(f"v_fmamk_f32 v{a}, v{step}, {fbits(float(m))}, v{base}")
        p(f"v_cos_f32 v{c0}, v{a0}")
        p(f"v_cos_f32 v{c1}, v{a1}")
        p(f"v_sin_f32 v{s0}, v{a0}")
        p(f"v_sin_f32 v{s1}, v{a1}")
        p(f"v_cvt_pk_bf16_f32 v{dst_cos + i//2}, v{c0}, v{c1}")
        p(f"v_cvt_pk_bf16_f32 v{dst_sin + i//2}, v{s0}, v{s1}")
        if neg_sin is not None: p(f"v_xor_b32 v{neg_sin + i//2}, 0x80008000, v{dst_sin + i//2}")
        if neg_cos is not None: p(f"v_xor_b32 v{neg_cos + i//2}, 0x80008000, v{dst_cos + i//2}")

def kernel_text(name, prog):
    body, st = prog.finalize()
    return f".globl {name}\n.p2align 8\n.type {name},@function\n{name}:\n{body}", st

def kd(name, vgpr, agpr=0, sgpr=96):
    acc = (vgpr + 3) // 4 * 4
    return f""".p2align 6
.amdhsa_kernel {name}
  .amdhsa_next_free_vgpr {acc + agpr}
  .amdhsa_next_free_sgpr {sgpr}
  .amdhsa_accum_offset {acc}
  .amdhsa_group_segment_fixed_size 0
  .amdhsa_kernarg_size 80
  .amdhsa_user_sgpr_count 2
  .amdhsa_user_sgpr_kernarg_segment_ptr 1
  .amdhsa_system_sgpr_workgroup_id_x 1
.end_amdhsa_kernel
"""
```

```python
from common import *

def gen_p1(p):
    SC, SS2, SHALF, SW = 20, 21, 22, 23
    p(f"""
    s_lshr_b32 s{SC}, s2, 3
    s_and_b32 s{SC}, s{SC}, 3              ; class
    s_and_b32 s24, s2, 7
    s_lshr_b32 s25, s2, 5
    s_lshl_b32 s25, s25, 3
    s_or_b32 s24, s24, s25                 ; tile 0..63
    s_and_b32 s{SS2}, s24, 31
    s_lshr_b32 s{SHALF}, s24, 5
    v_lshrrev_b32 v1, 6, v0
    v_and_b32 v0, 63, v0                   ; lane
    v_readfirstlane_b32 s{SW}, v1          ; wave
    v_and_b32 v2, 31, v0
    v_lshrrev_b32 v3, 5, v0                ; h
    """)
    p(f"""
    s_lshl_b32 s24, s{SHALF}, 10
    s_add_u32 s24, s24, s{SS2}
    s_mul_i32 s24, s24, 896
    s_lshl_b32 s25, s{SW}, 5
    s_add_u32 s24, s24, s25
    v_mul_u32_u24 v4, 28672, v2            ; 32*896
    v_lshl_add_u32 v4, v3, 4, v4
    v_add_u32 v4, s24, v4
    """)
    X = 8
    p("s_waitcnt lgkmcnt(0)")
    srd(p, 4, 40, 2048 * 896)
    srd(p, 8, 42, WS_SIZE)
    for d1 in range(7):
        p(f"buffer_load_dwordx4 v[{X+4*d1}:{X+4*d1+3}], v4, s[4:7], 0 offen offset:{128*d1}")
    BC, BS = 40, 56
    T = 72
    p(f"""
    v_and_b32 v5, 15, v2                   ; k2 local
    v_lshrrev_b32 v6, 4, v2                ; part
    s_lshl_b32 s24, s{SW}, 4
    v_add_u32 v5, s24, v5                  ; k2
    v_mul_u32_u24 v5, 7, v5
    v_add_u32 v5, s{SC}, v5                ; kappa
    v_mov_b32 v7, 0x3e800000               ; +0.25
    v_cmp_lt_u32 vcc, 224, v5
    v_mov_b32 v72, 0xbe800000              ; -0.25
    v_cndmask_b32 v7, v7, v72, vcc
    v_cmp_eq_u32 vcc, 0, v6
    v_cndmask_b32 v7, v7, 0, vcc
    v_cvt_f32_u32 v73, v5
    v_mul_f32 v73, {fbits(1.0/448)}, v73
    v_cvt_f32_u32 v74, v3
    v_mul_f32 v74, 0x41000000, v74         ; 8h
    v_fma_f32 v74, v74, v73, v7            ; base
    """)
    mults = [16 * t + j for t in range(4) for j in range(8)]
    sincos_pack(p, BC, BS, 32, 74, 73, mults, 76)
    p(f"""
    v_sub_u32 v76, 448, v5
    v_cmp_lt_u32 vcc, 224, v5
    v_cndmask_b32 v76, v5, v76, vcc        ; k
    v_subrev_u32 v77, 1, v76               ; k-1   (k=0 -> 0xffffffff)
    v_lshlrev_b32 v77, 13, v77
    v_lshl_add_u32 v77, v6, 6, v77
    v_lshl_add_u32 v77, v3, 4, v77
    s_lshl_b32 s24, s{SS2}, 8
    s_lshl_b32 s25, s{SHALF}, 7
    s_add_u32 s24, s24, s25
    v_add_u32 v77, s24, v77
    v_subrev_u32 v78, 1, v5
    v_cmp_le_u32 vcc, 224, v78
    s_cmp_eq_u32 s{SC}, 0
    s_cselect_b64 s[26:27], vcc, 0
    v_mov_b32 v79, {OOB}
    v_cndmask_b32 v7, v77, v79, s[26:27]
    """)
    CO = 80
    p(f"v_cvt_f32_u32 v76, s{SC}")
    for m in range(1, 4):
        p(f"v_mul_f32 v77, {fbits(m/7.0)}, v76")
        p(f"v_cos_f32 v{CO + 2*(m-1)}, v77")
        p(f"v_sin_f32 v{CO + 6 + 2*(m-1)}, -v77")
    p(f"""
    s_cmp_eq_u32 s{SC}, 0
    s_cselect_b32 s28, 0x40e00000, 0
    """)
    U = 92
    TT = 106
    AR, AI = 120, 128
    SUM, SQ = 136, 138
    TS = 140
    for i in range(4):
        for d1 in range(7):
            p(f"v_lshlrev_b32 v{U+2*d1}, 16, v{X+4*d1+i}")
            p(f"v_and_b32 v{U+2*d1+1}, 0xffff0000, v{X+4*d1+i}")
        u = lambda d: f"v[{U+2*d}:{U+2*d+1}]"
        t = lambda q: f"v[{TT+2*q}:{TT+2*q+1}]"
        for q in range(3):
            p(f"v_pk_add_f32 {t(q)}, {u(q+1)}, {u(6-q)}")
            p(f"v_pk_add_f32 {t(3+q)}, {u(q+1)}, {u(6-q)} neg_lo:[0,1] neg_hi:[0,1]")
        arr = f"v[{AR+2*i}:{AR+2*i+1}]"; aii = f"v[{AI+2*i}:{AI+2*i+1}]"
        co = lambda q: f"v[{CO+2*q}:{CO+2*q+1}]"
        p(f"v_pk_fma_f32 {arr}, {t(0)}, {co(0)}, {u(0)} op_sel_hi:[1,0,1]")
        p(f"v_pk_mul_f32 {aii}, {t(3)}, {co(3)} op_sel_hi:[1,0]")
        p(f"v_pk_fma_f32 {arr}, {t(1)}, {co(1)}, {arr} op_sel_hi:[1,0,1]")
        p(f"v_pk_fma_f32 {aii}, {t(4)}, {co(4)}, {aii} op_sel_hi:[1,0,1]")
        p(f"v_pk_fma_f32 {arr}, {t(2)}, {co(2)}, {arr} op_sel_hi:[1,0,1]")
        p(f"v_pk_fma_f32 {aii}, {t(5)}, {co(5)}, {aii} op_sel_hi:[1,0,1]")
        sm = f"v[{SUM}:{SUM+1}]"; sq = f"v[{SQ}:{SQ+1}]"; ts = f"v[{TS}:{TS+1}]"
        p(f"v_pk_add_f32 {ts}, {t(0)}, {t(1)}")
        if i == 0: p(f"v_pk_add_f32 {sm}, {t(2)}, {u(0)}")
        else:
            p(f"v_pk_add_f32 {sm}, {sm}, {t(2)}")
            p(f"v_pk_add_f32 {sm}, {sm}, {u(0)}")
        p(f"v_pk_add_f32 {sm}, {sm}, {ts}")
        for d1 in range(7):
            if i == 0 and d1 == 0: p(f"v_pk_mul_f32 {sq}, {u(0)}, {u(0)}")
            else: p(f"v_pk_fma_f32 {sq}, {u(d1)}, {u(d1)}, {sq}")
    p(f"""
    v_add_f32 v{SUM}, v{SUM}, v{SUM+1}
    v_add_f32 v{SUM+1}, v{SQ}, v{SQ+1}
    v_mov_b32 v{SQ}, v{SUM}
    v_mov_b32 v{SQ+1}, v{SUM+1}
    v_permlane32_swap_b32 v{SUM}, v{SQ}
    v_permlane32_swap_b32 v{SUM+1}, v{SQ+1}
    v_add_f32 v{SUM}, v{SUM}, v{SQ}
    v_add_f32 v{SUM+1}, v{SUM+1}, v{SQ+1}
    v_lshlrev_b32 v76, 3, v2               ; row*8
    s_lshl_b32 s24, s{SW}, 8
    v_add_u32 v77, s24, v76
    ds_write_b64 v77, v[{SUM}:{SUM+1}] offset:16384
    s_waitcnt lgkmcnt(0)
    s_barrier
    ds_read_b64 v[142:143], v76 offset:16384
    ds_read_b64 v[144:145], v76 offset:{16384+256}
    ds_read_b64 v[146:147], v76 offset:{16384+512}
    ds_read_b64 v[148:149], v76 offset:{16384+768}
    v_pk_add_f32 v[142:143], v[142:143], v[144:145]
    v_pk_add_f32 v[146:147], v[146:147], v[148:149]
    v_pk_add_f32 v[142:143], v[142:143], v[146:147]
    v_mul_f32 v142, {fbits(1.0/448)}, v142      ; mean
    v_mul_f32 v143, {fbits(1.0/448)}, v143      ; E[x^2]
    v_fma_f32 v143, -v142, v142, v143           ; var
    v_max_f32 v143, 0, v143
    v_add_f32 v143, {fbits(1e-5)}, v143
    v_rsq_f32 v144, v143                        ; rstd
    v_mul_f32 v146, s28, v142
    v_mul_f32 v146, v146, v144                  ; K0*m*r
    """)
    for i in range(4):
        arr = f"v[{AR+2*i}:{AR+2*i+1}]"; aii = f"v[{AI+2*i}:{AI+2*i+1}]"
        p(f"v_pk_fma_f32 {arr}, {arr}, v[144:145], v[146:147] op_sel_hi:[1,0,0] neg_lo:[0,0,1] neg_hi:[0,0,1]")
        p(f"v_pk_mul_f32 {aii}, {aii}, v[144:145] op_sel_hi:[1,0]")
    PK = 152
    for i in range(4):
        p(f"v_cvt_pk_bf16_f32 v{PK+i}, v{AR+2*i}, v{AR+2*i+1}")
        p(f"v_cvt_pk_bf16_f32 v{PK+4+i}, v{AI+2*i}, v{AI+2*i+1}")
    p(f"""
    v_mul_u32_u24 v76, 272, v2
    v_lshl_add_u32 v77, v3, 4, v76         ; row*272 + h*16
    s_lshl_b32 s24, s{SW}, 5
    v_add_u32 v78, s24, v77
    ds_write_b128 v78, v[{PK}:{PK+3}]
    ds_write_b128 v78, v[{PK+4}:{PK+7}] offset:128
    s_waitcnt lgkmcnt(0)
    s_barrier
    """)
    FA = 160
    for t in range(4):
        p(f"ds_read_b128 v[{FA+4*t}:{FA+4*t+3}], v77 offset:{32*t}")
        p(f"ds_read_b128 v[{FA+16+4*t}:{FA+16+4*t+3}], v77 offset:{128+32*t}")
    ACC = 192
    for t in range(4):
        c = "0" if t == 0 else f"v[{ACC}:{ACC+15}]"
        p(f"v_mfma_f32_32x32x16_bf16 v[{ACC}:{ACC+15}], v[{FA+4*t}:{FA+4*t+3}], v[{BC+4*t}:{BC+4*t+3}], {c}")
        p(f"v_mfma_f32_32x32x16_bf16 v[{ACC}:{ACC+15}], v[{FA+16+4*t}:{FA+16+4*t+3}], v[{BS+4*t}:{BS+4*t+3}], v[{ACC}:{ACC+15}]")
    O = 208
    for q in range(4):
        p(f"v_cvt_pk_bf16_f32 v{O+2*q}, v{ACC+4*q}, v{ACC+4*q+1}")
        p(f"v_cvt_pk_bf16_f32 v{O+2*q+1}, v{ACC+4*q+2}, v{ACC+4*q+3}")
    for qq in range(2):
        b = O + 4 * qq
        p(f"v_permlane32_swap_b32 v{b}, v{b+2}")
        p(f"v_permlane32_swap_b32 v{b+1}, v{b+3}")
    p(f"buffer_store_dwordx4 v[{O}:{O+3}], v7, s[8:11], s29 offen")
    p(f"buffer_store_dwordx4 v[{O+4}:{O+7}], v7, s[8:11], s29 offen offset:32")

def gen_prep(p):
    p("""
    s_sub_u32 s30, s2, 256
    v_lshrrev_b32 v1, 6, v0
    v_and_b32 v2, 63, v0
    v_readfirstlane_b32 s31, v1            ; wave
    s_waitcnt lgkmcnt(0)
    """)
    srd(p, 4, 44, 2048 * 450); srd(p, 12, 46, 2048 * 450); srd(p, 8, 42, WS_SIZE)
    srd(p, 16, 48, 448 * 3584); srd(p, 20, 50, 448 * 3584); srd(p, 24, 52, 1792 * 896)
    p(f"""
    s_lshr_b32 s32, s30, 2
    s_and_b32 s33, s30, 3
    s_lshl_b32 s34, s32, 5
    s_lshl_b32 s35, s31, 3
    s_add_u32 s34, s34, s35                ; j0
    s_mul_i32 s35, s33, 56
    v_add_u32 v3, s35, v2                  ; k-1
    v_cmp_gt_u32 vcc, 56, v2
    v_mov_b32 v5, {OOB}
    v_lshlrev_b32 v4, 1, v3
    v_add_u32 v4, 2, v4                    ; k*2
    s_mul_i32 s36, s34, 450
    v_cndmask_b32 v4, v5, v4, vcc
    v_lshlrev_b32 v6, 13, v3               ; (k-1)*8192
    s_lshl_b32 s37, s34, 2
    v_add_u32 v6, s37, v6
    v_cndmask_b32 v6, v5, v6, vcc
    """)
    for r in range(8):
        p(f"buffer_load_ushort v{8+r}, v4, s[4:7], s36 offen offset:{450*r}")
        p(f"buffer_load_ushort v{40+r}, v4, s[12:15], s36 offen offset:{450*r}")
    p(f"""
    s_cmp_ge_u32 s30, 224
    s_cbranch_scc1 Lprep_wt_only
    """, tag='nosettle')
    p(f"""
    s_lshr_b32 s38, s30, 4                 ; tp
    s_and_b32 s39, s30, 15                 ; ft
    s_mul_i32 s60, s38, {32*3584}
    s_mul_i32 s61, s39, 224
    s_add_u32 s60, s60, s61
    """)
    for rnd in range(4):
        lab = f"Lw13_skip{rnd}"
        p(f"""
        s_add_u32 s62, s31, {4*rnd}        ; q
        """)
        if rnd == 3:
            p(f"s_cmp_ge_u32 s62, 14\ns_cbranch_scc1 {lab}", tag='nosettle')
        p(f"""
        s_cmp_ge_u32 s62, 7
        s_cselect_b32 s63, 7, 0
        s_sub_u32 s64, s62, s63            ; q mod 7
        s_lshl_b32 s64, s64, 6
        v_add_u32 v20, s64, v2             ; i' (0..447)
        v_mul_u32_u24 v21, 4682, v20
        v_lshrrev_b32 v21, 16, v21         ; row = i'/14  (4682/65536)
        v_mul_u32_u24 v22, 14, v21
        v_sub_u32 v22, v20, v22            ; seg
        v_mul_u32_u24 v21, 3584, v21
        v_lshl_add_u32 v21, v22, 4, v21
        s_lshl_b32 s65, s62, 10            ; q*1024
        s_cmp_ge_u32 s62, 7
        s_cselect_b32 s66, 128, 0
        s_add_u32 s65, s65, s66
        s_mov_b32 m0, s65
        s_cmp_ge_u32 s62, 7
        s_cbranch_scc1 Lw13_b{rnd}
        buffer_load_dwordx4 v21, s[16:19], s60 offen lds
        s_branch Lw13_c{rnd}
        Lw13_b{rnd}:
        buffer_load_dwordx4 v21, s[20:23], s60 offen lds
        Lw13_c{rnd}:
        """, tag='nosettle')
        if rnd == 3: p(f"{lab}:", tag='nosettle')
    W2L = 16384
    p(f"""
    s_lshr_b32 s38, s30, 1                 ; t
    s_and_b32 s39, s30, 1                  ; nh
    s_mul_i32 s67, s38, {16*896}
    s_mul_i32 s61, s39, 448
    s_add_u32 s67, s67, s61
    """)
    for rnd in range(2):
        lab = f"Lw2_skip{rnd}"
        p(f"s_add_u32 s62, s31, {4*rnd}")
        if rnd == 1: p(f"s_cmp_ge_u32 s62, 7\ns_cbranch_scc1 {lab}", tag='nosettle')
        p(f"""
        s_lshl_b32 s64, s62, 6
        v_add_u32 v20, s64, v2             ; i (0..447): row = i/28, seg = i%28
        v_mul_u32_u24 v21, 2341, v20
        v_lshrrev_b32 v21, 16, v21
        v_mul_u32_u24 v22, 28, v21
        v_sub_u32 v22, v20, v22
        v_mul_u32_u24 v21, 896, v21
        v_lshl_add_u32 v21, v22, 4, v21
        s_lshl_b32 s65, s62, 10
        s_add_u32 s65, s65, {W2L}
        s_mov_b32 m0, s65
        s_nop 0
        buffer_load_dwordx4 v21, s[24:27], s67 offen lds
        """)
        if rnd == 1: p(f"{lab}:", tag='nosettle')
    p("""
    s_waitcnt vmcnt(0)
    s_barrier
    """)
    p(f"""
    v_lshrrev_b32 v20, 4, v2
    v_and_b32 v21, 1, v20                  ; matrix
    v_lshrrev_b32 v20, 1, v20              ; h
    v_bfe_u32 v22, v2, 2, 2                ; r
    v_and_b32 v23, 3, v2                   ; c
    v_lshl_add_u32 v24, v20, 3, v22        ; 8h + r
    v_mul_u32_u24 v24, 224, v24
    v_lshl_add_u32 v24, v23, 3, v24
    v_mul_u32_u24 v25, {7168+128}, v21
    v_add_u32 v24, v24, v25
    v_lshl_add_u32 v26, v20, 2, v22        ; 4h + r
    v_mul_u32_u24 v26, 448, v26
    v_lshl_add_u32 v26, v23, 3, v26
    v_lshl_add_u32 v26, v21, 5, v26
    v_add_u32 v26, {W2L}, v26
    v_lshlrev_b32 v27, 4, v2               ; lane*16
    s_lshr_b32 s38, s30, 4                 ; tp
    s_and_b32 s39, s30, 15                 ; ft
    """)
    for rnd in range(4):
        lab = f"Lw13t_skip{rnd}"
        p(f"s_add_u32 s62, s31, {4*rnd}")
        if rnd == 3: p(f"s_cmp_ge_u32 s62, 14\ns_cbranch_scc1 {lab}")
        p(f"""
        s_cmp_ge_u32 s62, 7
        s_cselect_b32 s63, 1, 0            ; tt
        s_mul_i32 s64, s63, 7
        s_sub_u32 s64, s62, s64            ; pp
        s_mul_i32 s65, s63, {16*224}
        s_lshl_b32 s66, s64, 5
        s_add_u32 s65, s65, s66
        v_add_u32 v28, s65, v24
        ds_read_b64_tr_b16 v[32:33], v28
        ds_read_b64_tr_b16 v[34:35], v28 offset:{4*224}
        s_mul_i32 s65, s39, 7
        s_add_u32 s65, s65, s64            ; P
        s_mul_i32 s65, s65, 28
        s_lshl_b32 s66, s38, 1
        s_add_u32 s65, s65, s66
        s_add_u32 s65, s65, s63            ; P*28 + t
        s_lshl_b32 s65, s65, 10
        s_add_u32 s65, s65, {W13F}
        buffer_store_dwordx4 v[32:35], v27, s[8:11], s65 offen
        """)
        if rnd == 3: p(f"{lab}:")
        else: p("s_nop 1")
    p(f"""
    s_lshr_b32 s38, s30, 1                 ; t
    s_and_b32 s39, s30, 1                  ; nh
    """)
    for rnd in range(2):
        lab = f"Lw2t_skip{rnd}"
        p(f"s_add_u32 s62, s31, {4*rnd}")
        if rnd == 1: p(f"s_cmp_ge_u32 s62, 7\ns_cbranch_scc1 {lab}")
        p(f"""
        s_lshl_b32 s65, s62, 6
        v_add_u32 v28, s65, v26
        ds_read_b64_tr_b16 v[36:37], v28
        ds_read_b64_tr_b16 v[38:39], v28 offset:{8*448}
        s_mul_i32 s65, s39, 7
        s_add_u32 s65, s65, s62            ; nb
        s_mul_i32 s65, s65, 112
        s_add_u32 s65, s65, s38
        s_lshl_b32 s65, s65, 10
        s_add_u32 s65, s65, {W2F}
        buffer_store_dwordx4 v[36:39], v27, s[8:11], s65 offen
        """)
        if rnd == 1: p(f"{lab}:")
        else: p("s_nop 1")
    p("Lprep_wt_only:")
    p("s_waitcnt vmcnt(0)")
    for r in range(8):
        p(f"v_lshl_or_b32 v{8+r}, v{40+r}, 16, v{8+r}")
    p(f"s_mov_b32 s38, {WT}")
    p(f"buffer_store_dwordx4 v[8:11], v6, s[8:11], s38 offen")
    p(f"buffer_store_dwordx4 v[12:15], v6, s[8:11], s38 offen offset:16")

def gen_k1():
    p = Prog()
    p("""
    s_cmp_ge_u32 s2, 512
    s_cbranch_scc1 Lk1_end
    s_cmp_ge_u32 s2, 256
    s_cbranch_scc1 Lk1_prep
    s_load_dwordx2 s[40:41], s[0:1], 0
    s_load_dwordx2 s[42:43], s[0:1], 72
    """)
    p(f"s_mov_b32 s29, {X1T}")
    gen_p1(p)
    p("s_endpgm")
    p("Lk1_prep:")
    p("""
    s_load_dwordx2 s[42:43], s[0:1], 72
    s_load_dwordx4 s[44:47], s[0:1], 8
    s_load_dwordx4 s[48:51], s[0:1], 32
    s_load_dwordx2 s[52:53], s[0:1], 48
    """)
    gen_prep(p)
    p("Lk1_end:")
    p("s_endpgm")
    return p
```

```python
import sys
from k1 import *; from k2 import *; from k3 import *; from k4 import *
N = "sequential_preLN__spectral_gfnet__glu_gated_swiglu__prompt"
HDR = open("cdna_kernels/" + N + ".s.ref").read().split("; Override launch")[0]
def build(path):
    ks = [("k1_kernel", gen_k1(), (512, 256, 24576), (232, 0)),
          ("k2_kernel", gen_k2(), (224, 256, 16384), (232, 0)),
          ("k3_kernel", gen_k3(), (256, 256, 16384), (208, 0)),
          ("k4_kernel", gen_k4(), (256, 256, 114688), (128, 224)),
          ("k5_kernel", gen_k5(), (224, 256, 65536), (256, 256))]
    s = HDR
    for name, p, (g, b, lds), regs in ks:
        s += f"; @launch kernel={name} grid=({g},1,1) block=({b},1,1) lds={lds}\n"
    s += '.amdgcn_target "amdgcn-amd-amdhsa--gfx950"\n.text\n'
    for name, p, _, regs in ks:
        t, st = kernel_text(name, p)
        print(name, st, "lines", t.count("\n"))
        s += t
    s += '.section .rodata,"a"\n'
    for name, p, _, (v, a) in ks:
        s += kd(name, v, a)
    open(path, "w").write(s)
if __name__ == "__main__":
    build(sys.argv[1] if len(sys.argv) > 1 else "base5.s")
```

```python
from asm import *
import math
X1T = 0x000000
WT  = 0x200000
Y1T = 0x400000
HRES= 0x600000
AF  = 0x800000
W13F= 0xA00000
W2F = 0xE00000
HF  = 0x1000000
FLG = 0x1800000
WS_SIZE = 0x2000000
OOB = 0x7ff00000

def srd(p, s, ptr_s, size):
    p(f"s_mov_b32 s{s}, s{ptr_s}")
    p(f"s_and_b32 s{s+1}, s{ptr_s+1}, 0xffff")
    p(f"s_mov_b32 s{s+2}, {size}")
    p(f"s_mov_b32 s{s+3}, 0x20000")

def sincos_pack(p, dst_cos, dst_sin, n, base, step, mults, tmp, neg_sin=None, neg_cos=None):
    assert n % 2 == 0
    for i in range(0, n, 2):
        a0, a1, c0, c1, s0, s1 = [tmp + q for q in range(6)]
        for (a, m) in ((a0, mults[i]), (a1, mults[i + 1])):
            if m == 0: p(f"v_mov_b32 v{a}, v{base}")
            else: p(f"v_fmamk_f32 v{a}, v{step}, {fbits(float(m))}, v{base}")
        p(f"v_cos_f32 v{c0}, v{a0}")
        p(f"v_cos_f32 v{c1}, v{a1}")
        p(f"v_sin_f32 v{s0}, v{a0}")
        p(f"v_sin_f32 v{s1}, v{a1}")
        p(f"v_cvt_pk_bf16_f32 v{dst_cos + i//2}, v{c0}, v{c1}")
        p(f"v_cvt_pk_bf16_f32 v{dst_sin + i//2}, v{s0}, v{s1}")
        if neg_sin is not None: p(f"v_xor_b32 v{neg_sin + i//2}, 0x80008000, v{dst_sin + i//2}")
        if neg_cos is not None: p(f"v_xor_b32 v{neg_cos + i//2}, 0x80008000, v{dst_cos + i//2}")

def kernel_text(name, prog):
    body, st = prog.finalize()
    return f".globl {name}\n.p2align 8\n.type {name},@function\n{name}:\n{body}", st

def kd(name, vgpr, agpr=0, sgpr=96):
    acc = (vgpr + 3) // 4 * 4
    return f""".p2align 6
.amdhsa_kernel {name}
  .amdhsa_next_free_vgpr {acc + agpr}
  .amdhsa_next_free_sgpr {sgpr}
  .amdhsa_accum_offset {acc}
  .amdhsa_group_segment_fixed_size 0
  .amdhsa_kernarg_size 80
  .amdhsa_user_sgpr_count 2
  .amdhsa_user_sgpr_kernarg_segment_ptr 1
  .amdhsa_system_sgpr_workgroup_id_x 1
.end_amdhsa_kernel
"""

STAMP = {'on': False, 'n': 0}
def stamp(p):
    if not STAMP['on']: return
    i = STAMP['n']; STAMP['n'] += 1
    assert i < 12
    p(f"s_memtime s[{72+2*i}:{73+2*i}]")
def stamp_begin():
    STAMP['n'] = 0
def stamp_end(p, wg=0):
    if not STAMP['on']: return
    n = STAMP['n']
    lab = f"Lstamp_{id(p) % 100000}_{n}"
    p(f"""
    s_waitcnt lgkmcnt(0)
    s_cmp_lg_u32 s2, {wg}
    s_cbranch_scc1 {lab}
    s_cmp_lg_u32 s23, 0
    s_cbranch_scc1 {lab}
    s_load_dwordx2 s[68:69], s[0:1], 64
    s_waitcnt lgkmcnt(0)
    s_mov_b32 s96, s68
    s_and_b32 s97, s69, 0xffff
    s_mov_b32 s98, 256
    s_mov_b32 s99, 0x20000
    """)
    p("v_mov_b32 v1, 0")
    for i in range(n):
        p(f"s_sub_u32 s70, s{72+2*i}, s72")
        p(f"v_mov_b32 v2, s70")
        p(f"buffer_store_dword v2, v1, s[96:99], 0 offen offset:{4*i}")
    p(f"s_waitcnt vmcnt(0)\n{lab}:")
```

```python
import sys
from common import *
def start_stamp_code(slot):
    return f"""
  s_cmp_lg_u32 s2, 0
  s_cbranch_scc1 Lst_skip{slot}
  s_memrealtime s[60:61]
  s_load_dwordx2 s[62:63], s[0:1], 72
  s_waitcnt lgkmcnt(0)
  s_mov_b32 s64, s62
  s_and_b32 s65, s63, 0xffff
  s_mov_b32 s66, {WS_SIZE}
  s_mov_b32 s67, 0x20000
  v_mov_b32 v250, s60
  v_mov_b32 v251, s61
  v_mov_b32 v252, {FLG + slot*8}
  buffer_store_dwordx2 v[250:251], v252, s[64:67], 0 offen
  s_waitcnt vmcnt(0)
Lst_skip{slot}:
"""
def spin_kernel(slot_a, slot_b, M):
    return f""".globl spin_kernel
.p2align 8
.type spin_kernel,@function
spin_kernel:
  s_cmp_ge_u32 s2, 1
  s_cbranch_scc1 Lspin_end
  s_memrealtime s[20:21]
  s_load_dwordx2 s[4:5], s[0:1], 72
  s_waitcnt lgkmcnt(0)
  s_add_u32 s4, s4, {FLG}
  s_addc_u32 s5, s5, 0
  s_load_dwordx2 s[8:9], s[4:5], {slot_a*8}
  s_load_dwordx2 s[10:11], s[4:5], {max(slot_b,0)*8}
  s_waitcnt lgkmcnt(0)
  {"s_mov_b32 s10, s20" if slot_b < 0 else ""}
  s_sub_u32 s12, s10, s8
  s_min_u32 s12, s12, 20000
  s_mul_i32 s12, s12, {M}
Lspin:
  s_memrealtime s[22:23]
  s_waitcnt lgkmcnt(0)
  s_sub_u32 s13, s22, s20
  s_cmp_lt_u32 s13, s12
  s_cbranch_scc1 Lspin
Lspin_end:
  s_endpgm
"""
SPIN_KD = """.p2align 6
.amdhsa_kernel spin_kernel
  .amdhsa_next_free_vgpr 8
  .amdhsa_next_free_sgpr 32
  .amdhsa_accum_offset 8
  .amdhsa_group_segment_fixed_size 0
  .amdhsa_kernarg_size 80
  .amdhsa_user_sgpr_count 2
  .amdhsa_user_sgpr_kernarg_segment_ptr 1
  .amdhsa_system_sgpr_workgroup_id_x 1
.end_amdhsa_kernel
"""
def add_diag(src, dst, kernels, a, b, M):
    s = open(src).read()
    for i, k in enumerate(kernels):
        s = s.replace(f"\n{k}:\n", f"\n{k}:\n" + start_stamp_code(i))
    L = [l for l in s.split("\n") if l.startswith("; @launch")]
    s = s.replace(L[-1], L[-1] + "\n; @launch kernel=spin_kernel grid=(1,1,1) block=(64,1,1) lds=0")
    s = s.replace('.section .rodata,"a"\n', spin_kernel(a, b, M) + '.section .rodata,"a"\n' + SPIN_KD)
    import re
    s = re.sub(r"\.amdhsa_next_free_vgpr (\d+)\n(.*\n)  \.amdhsa_accum_offset (\d+)", lambda m: m.group(0) if int(m.group(3)) >= 256 or int(m.group(1)) <= 8 else f".amdhsa_next_free_vgpr {256 + int(m.group(1)) - int(m.group(3))}\n{m.group(2)}  .amdhsa_accum_offset 256", s)
    open(dst, "w").write(s)
if __name__ == "__main__":
    W = "work/"
    ks = ["k1_kernel", "k2_kernel", "k3_kernel", "k4_kernel", "k5_kernel"]
    add_diag(W + "base5.s", W + "d_m0.s", ks, 0, -1, 0)
    add_diag(W + "base5.s", W + "d_all.s", ks, 0, -1, 4)
    add_diag(W + "base5.s", W + "d_k1.s", ks, 0, 1, 10)
    add_diag(W + "base5.s", W + "d_k2.s", ks, 1, 2, 10)
    add_diag(W + "base5.s", W + "d_k3.s", ks, 2, 3, 10)
    add_diag(W + "base5.s", W + "d_k4.s", ks, 3, 4, 10)
```
